```python
import torch

def _softmax(x, axis=-1):
    return torch.softmax(x, dim=axis)
def _gelu(x):
    return torch.nn.functional.gelu(x, approximate="tanh")
def _silu(x):
    return torch.nn.functional.silu(x)
def _sigmoid(x):
    return torch.sigmoid(x)
def _layernorm(x, axis=-1, eps=1e-5):
    m = x.mean(dim=axis, keepdim=True)
    v = x.var(dim=axis, keepdim=True, unbiased=False)
    return (x - m) / torch.sqrt(v + eps)
def _scatter_add(tgt, idx, src, axis=0):
    return tgt.clone().index_add_(axis, idx, src)
def _segment_sum(src, seg, n):
    out = torch.zeros((n,) + src.shape[1:], dtype=src.dtype)
    return out.index_add_(0, seg, src)
def _pad(x, pw):
    flat = tuple(v for pair in reversed(pw) for v in pair)
    return torch.nn.functional.pad(x, flat)

kernel_name = 'gated_mix__softmax_full_mha__sliding_local_dilated__prompt'

def setup_inputs():

    _w = (lambda a: (lambda t: t.to(torch.bfloat16) if t.is_floating_point() else t)(torch.as_tensor(a)))
    def _A_setup():
        B, S, D = 1, 2048, 1024
        return {
            "x": _w((lambda *s: torch.randn(*s, dtype=torch.bfloat16) * 0.05)(B, S, D)),
            "wqkv": _w((lambda *s: torch.randn(*s, dtype=torch.bfloat16) * 0.8)(D, 3 * D)),
            "wo": _w((lambda *s: torch.randn(*s, dtype=torch.bfloat16) * 0.1)(D, D)),
        }
    _A_in = _A_setup()

    def _B_setup():
        B, S, D = 1, 2048, 1024
        return {
            "x": _w((lambda *s: torch.randn(*s, dtype=torch.bfloat16) * 0.05)(B, S, D)),
            "wqkv": _w((lambda *s: torch.randn(*s, dtype=torch.bfloat16) * 0.8)(D, 3 * D)),
            "wo": _w((lambda *s: torch.randn(*s, dtype=torch.bfloat16) * 0.05)(D, D)),
        }
    _B_in = _B_setup()

    return {
        "A_x": _A_in["x"],
        "A_wqkv": _A_in["wqkv"],
        "A_wo": _A_in["wo"],
        "B_x": _B_in["x"],
        "B_wqkv": _B_in["wqkv"],
        "B_wo": _B_in["wo"],
        "gate_w": _w((lambda *s: torch.randn(*s, dtype=torch.bfloat16) * 0.05)(1024) * 16.0),
    }

def reference(A_x, A_wqkv, A_wo, B_x, B_wqkv, B_wo, gate_w):
    def _A_ref(x, wqkv, wo):
        B, S, D = x.shape
        H = 32; Dh = D // H
        qkv = (lambda x, *d: x.permute(*d))((x @ wqkv).reshape(B, S, 3, H, Dh), 2, 0, 3, 1, 4)
        q, k, v = qkv[0], qkv[1], qkv[2]
        scale = Dh ** -0.5
        scores = torch.einsum("bhqd,bhkd->bhqk", q, k) * scale
        p = _softmax(scores, axis=-1)
        o = torch.einsum("bhqk,bhkd->bhqd", p, v)
        return (lambda x, *d: x.permute(*d))(o, 0, 2, 1, 3).reshape(B, S, D) @ wo

    def _B_ref(x, wqkv, wo):
        B, S, D = x.shape
        H = 32; Dh = D // H
        W, dil = 8, 2
        qkv = (lambda x, *d: x.permute(*d))((x @ wqkv).reshape(B, S, 3, H, Dh), 2, 0, 3, 1, 4)
        q, k, v = qkv[0], qkv[1], qkv[2]
        scale = Dh ** -0.5
        pos = torch.arange(S)
        off = torch.arange(W) * dil
        idx = pos[:, None] - off[None, :]
        mask = idx >= 0
        idx_c = torch.where(mask, idx, 0).reshape(-1)
        kg = k[:, :, idx_c, :].reshape(B, H, S, W, Dh)
        vg = v[:, :, idx_c, :].reshape(B, H, S, W, Dh)
        logits = torch.einsum("bhsd,bhswd->bhsw", q, kg) * scale
        logits = torch.where(mask[None, None, :, :], logits, -1e9)
        attn = _softmax(logits, axis=-1)
        o = torch.einsum("bhsw,bhswd->bhsd", attn, vg)
        return (lambda x, *d: x.permute(*d))(o, 0, 2, 1, 3).reshape(B, S, D) @ wo

    x = A_x
    g = _sigmoid((x * gate_w).sum(-1, keepdims=True))
    a = _A_ref(x, A_wqkv, A_wo)
    b = _B_ref(x, B_wqkv, B_wo)
    return g * a + (1 - g) * b
```

```python
class Asm:
    def __init__(self):
        self.lines = []
    def __call__(self, s=""):
        for l in s.split("\n"):
            l = l.rstrip()
            if not l.strip(): continue
            if l.strip().endswith(":") or l.strip().startswith("."):
                self.lines.append(l.strip())
            else:
                self.lines.append("    " + l.strip())
    def ext(self, lst):
        for l in lst: self(l)
    def text(self):
        return "\n".join(self.lines) + "\n"

def vr(b, n=1):
    return f"v{b}" if n == 1 else f"v[{b}:{b+n-1}]"
def sr(b, n=1):
    return f"s{b}" if n == 1 else f"s[{b}:{b+n-1}]"

class Alloc:
    def __init__(self, start, limit):
        self.p = start; self.limit = limit; self.names = {}; self.hi = start
    def __call__(self, name, n=1, align=1):
        self.p = (self.p + align - 1)//align*align
        b = self.p; self.p += n
        assert self.p <= self.limit, f"out of registers allocating {name}"
        self.hi = max(self.hi, self.p)
        self.names[name] = (b, n)
        return b
    def mark(self): return self.p
    def reset(self, m): self.p = m

def weave(main, fill):
    out = []
    for i, m in enumerate(main):
        out += fill.get(i, [])
        out.append(m)
    out += fill.get(len(main), [])
    return out

def mfma32(d, a, b, c=None):
    cs = "0" if c == 0 else vr(d if c is None else c, 16)
    return f"v_mfma_f32_32x32x16_bf16 {vr(d,16)}, {vr(a,4)}, {vr(b,4)}, {cs}"
def mfma16(d, a, b, c=None):
    cs = "0" if c == 0 else vr(d if c is None else c, 4)
    return f"v_mfma_f32_16x16x32_bf16 {vr(d,4)}, {vr(a,4)}, {vr(b,4)}, {cs}"
def smf(d, a, b, idx):
    return f"v_smfmac_f32_16x16x64_bf16 {vr(d,4)}, {vr(a,4)}, {vr(b,8)}, {vr(idx)}"
```

```python
from asmlib import *
import gen as G
from gen import *

S_HEAD = 29; S_KOFF = 30; S_WOFF = 31; S_WM0 = 32; S_RB3 = 33; S_CB3 = 34; S_OOFF = 35; S_SPIN = 36
S_FIDX = 38; S_WEND = 39; S_KV0 = 40; S_SLOW = 3
WS = f"s[{SRD_WS}:{SRD_WS+3}]"; XS = f"s[{SRD_X}:{SRD_X+3}]"; DS = f"s[{SRD_D}:{SRD_D+3}]"; DBG = f"s[{SRD_DBG}:{SRD_DBG+3}]"
P = S_PTR
O = [16, 32]; L = [48, 52]; S = [56, 72]; PP = [88, 96]
Q = [180, 188]; K = [196, 204, 212]; VV = [220, 228, 236]
AONES = 244; AIDX = 248; VKL = 249; VWO = 252
CM = [112, 128]
LDS_Q = 0; LDS_HALO = 16384; LDS_COMB = 31*4096; LDS_MISC = LDS_COMB + 8*4352
BIG = "0xf149f2ca"
SPIN_MAX = 1 << 16

def flag_store(a, vt, val):
    a(f"""
    v_mov_b32 v{vt}, {val}
    v_mov_b32 v{vt+1}, 0
    s_mov_b64 exec, 1
    buffer_store_byte v{vt}, v{vt+1}, {DBG}, s{S_FIDX} offen sc1
    s_mov_b64 exec, -1
    """)

def poll(a, vt, vaddr, soff, val, lab):
    a(f"""
    s_mov_b32 s{S_SPIN}, {SPIN_MAX}
    {lab}:
    buffer_load_ubyte v{vt}, v{vaddr}, {DBG}, {soff} offen sc1
    s_waitcnt vmcnt(0)
    v_cmp_le_u32 vcc, {val}, v{vt}
    s_sub_u32 s{S_SPIN}, s{S_SPIN}, 1
    s_cmp_eq_u64 vcc, -1
    s_cbranch_scc1 {lab}_ok
    s_sleep 1
    s_cmp_lg_u32 s{S_SPIN}, 0
    s_cbranch_scc1 {lab}
    {lab}_ok:
    """)

def btiles(a, tiles, Kp, Qp, Vf, Mown, Mprev, ones, vL16, soff):
    n = len(tiles)
    def gap(need, have):
        if need > have: a(f"s_nop {need-have-1}")
    for T, b in tiles:
        a(mfma16(b, Kp(T-1), Qp(T), Mprev)); a(mfma16(b+4, Kp(T), Qp(T), Mown))
    gap(8, 0)
    m = lambda b: b + 24
    t = lambda b: b + 25
    for T, b in tiles: a(f"v_max3_f32 v{m(b)}, v{b}, v{b+1}, v{b+2}")
    for T, b in tiles: a(f"v_max3_f32 v{m(b)}, v{m(b)}, v{b+3}, v{b+4}")
    for T, b in tiles: a(f"v_max3_f32 v{m(b)}, v{m(b)}, v{b+5}, v{b+6}")
    for T, b in tiles: a(f"v_max_f32 v{m(b)}, v{m(b)}, v{b+7}")
    for op in ("v_permlane16_swap_b32", "v_permlane32_swap_b32"):
        for T, b in tiles: a(f"v_mov_b32 v{t(b)}, v{m(b)}")
        gap(2, n-1)
        for T, b in tiles: a(f"{op} v{m(b)}, v{t(b)}")
        gap(1, n-1)
        for T, b in tiles: a(f"v_max_f32 v{m(b)}, v{m(b)}, v{t(b)}")
    for T, b in tiles:
        for i in range(8): a(f"v_sub_f32 v{b+i}, v{b+i}, v{m(b)}")
    for T, b in tiles:
        for i in range(8): a(f"v_exp_f32 v{b+i}, v{b+i}")
    gap(1, 0)
    for T, b in tiles:
        for i in range(4): a(f"v_cvt_pk_bf16_f32 v{b+8+i}, v{b+2*i}, v{b+2*i+1}")
    gap(2, 0)
    for T, b in tiles:
        a(mfma16(b+20, ones, b+8, 0)); a(mfma16(b+12, Vf(0, T-1), b+8, 0)); a(mfma16(b+16, Vf(1, T-1), b+8, 0))
    gap(8, 0)
    for T, b in tiles: a(f"v_rcp_f32 v{b+20}, v{b+20}")
    gap(1, n-1)
    for T, b in tiles:
        for i in range(8): a(f"v_mul_f32 v{b+12+i}, v{b+12+i}, v{b+20}")
        for i in range(4): a(f"v_cvt_pk_bf16_f32 v{b+8+i}, v{b+12+2*i}, v{b+13+2*i}")
        a(f"buffer_store_dwordx4 {vr(b+8,4)}, v{vL16}, {WS}, s{soff} offen offset:{T*1024} sc1")

def att_seg(t, Kq, Vp, fill, cm, skip_qk=False):
    u = 1 - t
    e = [f"v_exp_f32 v{S[t]+i}, v{S[t]+i}" for i in range(16)]
    c = [f"v_cvt_pk_bf16_f32 v{PP[t]+i}, v{S[t]+2*i}, v{S[t]+2*i+1}" for i in range(8)]
    M1 = mfma32(S[u], Kq, Q[u], CM[u] if cm else 0); M2 = mfma32(S[u], Kq+4, Q[u]+4)
    M3 = mfma32(O[u], Vp, PP[u]); M4 = mfma32(O[u], Vp+4, PP[u]+4); M5 = smf(L[u], AONES, PP[u], AIDX)
    s = [M1, e[0], e[1], e[2], e[3], c[0], M2, e[4], e[5], c[1], e[6], e[7], c[2], M3, e[8], e[9], c[3], e[10], e[11],
         M4, c[4], e[12], e[13], c[5], e[14], M5, e[15], c[6], c[7]]
    r = weave(s, fill)
    if skip_qk: r = [x for x in r if x not in (M1, M2)]
    return r

def ldK(buf, vL16): return [f"buffer_load_dwordx4 {vr(K[buf]+4*i,4)}, v{VKL}, {WS}, s{S_KOFF} offen offset:{i*1024} sc1" for i in range(2)]
def ldV(buf, vL16): return [f"buffer_load_dwordx4 {vr(VV[buf]+4*i,4)}, v{vL16}, {WS}, s{S_KOFF} offen offset:{2048+i*1024} sc1" for i in range(2)]

def att_prologue_loads(a, vL16):
    a(f"s_sub_u32 s{S_KOFF}, s{S_KV0}, 4096")
    a.ext(ldK(0, vL16)); a(f"s_add_u32 s{S_KOFF}, s{S_KOFF}, 4096")
    a.ext(ldV(0, vL16)); a.ext(ldK(1, vL16)); a(f"s_add_u32 s{S_KOFF}, s{S_KOFF}, 4096")
    a.ext(ldV(1, vL16)); a.ext(ldK(2, vL16)); a(f"s_add_u32 s{S_KOFF}, s{S_KOFF}, 4096")

def att_loop(a, cfg, vt, vL16, cm, lab):
    ex = 0 if cm else 2
    a(f"s_waitcnt vmcnt(8)")
    a(mfma32(S[0], K[0], Q[0], CM[0] if cm else 0)); a(mfma32(S[0], K[0]+4, Q[0]+4))
    a(f"s_mov_b32 s{S_IT}, 10")
    a("s_nop 10")
    a(f".p2align 6\n{lab}:")
    def block(i, loads=True, wait=8, dma=False, last=False):
        kb = i % 3; kn = (i+1) % 3; vb = i % 3; vp = (i-1) % 3
        f0 = {}; f1 = {}
        if loads:
            k0, k1 = ldK(kb, vL16); v0, v1 = ldV(vp, vL16)
            f0 = {7: [k0], 14: [k1], 20: [v0], 26: [v1, f"s_add_u32 s{S_KOFF}, s{S_KOFF}, 4096"]}
        f0.setdefault(29, []).append(f"s_waitcnt vmcnt({wait})")
        if dma:
            f1 = {1: [f"s_cmp_ge_u32 s{S_WM0}, s{S_WEND}", f"s_cselect_b32 m0, 0x30000, s{S_WM0}"],
                  7: [f"s_cselect_b32 s{S_T0}, 0x40000000, s{S_WOFF}", f"s_add_u32 s{S_WM0}, s{S_WM0}, 2048"],
                  14: [f"buffer_load_dwordx4 v{VWO}, {DS}, s{S_T0} offen lds"],
                  20: [f"buffer_load_dwordx4 v{VWO+1}, {DS}, s{S_T0} offen offset:1024 lds"],
                  26: [f"s_add_u32 s{S_WOFF}, s{S_WOFF}, 32768"]}
        return att_seg(0, K[kb], VV[vp], f0, cm) + att_seg(1, K[kn], VV[vb], f1, cm, skip_qk=last)
    a.ext(block(0, wait=8, dma=not cm)); a.ext(block(1, wait=8+ex)); a.ext(block(2, wait=8+ex))
    if not cm:
        a(f"""
        s_cmp_eq_u32 s{S_IT}, s{S_SLOW}
        s_cbranch_scc1 Lflag2
        Lflag2_ret:
        """)
    a(f"s_sub_u32 s{S_IT}, s{S_IT}, 1\ns_cmp_lg_u32 s{S_IT}, 0\ns_cbranch_scc1 {lab}")
    a.ext(block(30, loads=False, wait=4)); a.ext(block(31, loads=False, wait=0, last=True))
    a("s_nop 1")
    a(mfma32(O[1], VV[31 % 3], PP[1])); a(mfma32(O[1], VV[31 % 3]+4, PP[1]+4)); a(smf(L[1], AONES, PP[1], AIDX))

def att_zero(a):
    for r in list(range(O[0], O[0]+40)) + list(range(PP[1], PP[1]+8)) + list(range(VV[2], VV[2]+8)):
        a(f"v_mov_b32 v{r}, 0")

def emit(a, cfg, stamp, A, vt, vL16):
    c_, g_, vVf, vKf = vt, vt+1, vt+2, vt+3
    a(f"""
    v_and_b32 v{c_}, 15, v0
    v_lshrrev_b32 v{g_}, 4, v0
    v_lshlrev_b32 v{vVf}, 9, v{g_}
    v_lshrrev_b32 v{vt+4}, 3, v{c_}
    v_and_b32 v{vt+5}, 7, v0
    v_lshl_add_u32 v{vt+4}, v{vt+4}, 4, v{vt+5}
    v_lshl_add_u32 v{vKf}, v{vt+4}, 4, v{vVf}
    v_lshl_add_u32 v{vVf}, v{c_}, 4, v{vVf}
    s_lshl_b32 s{S_HEAD}, s{S_HP}, 1
    s_add_u32 s{S_HEAD}, s{S_HEAD}, s{S_HH}
    s_lshl_b32 s{S_FIDX}, s{S_HP}, 4
    s_add_u32 s{S_FIDX}, s{S_FIDX}, s{S_RB}
    s_mov_b32 s{S_T3}, {f32(QSCALE)}
    s_cmp_lg_u32 s{S_BR}, 0
    s_cbranch_scc1 Lepi_b
    """)
    GX = 196; GW = 212; PK = 112
    a(f"""
    s_lshl_b32 s{S_T0}, s{S_HEAD}, 6
    s_lshl_b32 s{S_T1}, s{S_RB}, 2
    s_add_u32 s{S_T0}, s{S_T0}, s{S_T1}
    s_lshl_b32 s{S_T1}, s{S_RQ}, 1
    s_add_u32 s{S_T0}, s{S_T0}, s{S_T1}
    s_lshl_b32 s{S_T0}, s{S_T0}, 12
    s_add_u32 s{S_T0}, s{S_T0}, {WS_KV}
    s_add_u32 s{S_T1}, s{S_T0}, 4096
    """)
    def pack(dst, src0, src1):
        return [f"v_cvt_pk_bf16_f32 v{dst}, v{src0}, v{src0+1}", f"v_cvt_pk_bf16_f32 v{dst+1}, v{src0+2}, v{src0+3}",
                f"v_cvt_pk_bf16_f32 v{dst+2}, v{src1}, v{src1+1}", f"v_cvt_pk_bf16_f32 v{dst+3}, v{src1+2}, v{src1+3}"]
    for T in range(4):
        a.ext(pack(PK+4*T, A("K",T,0), A("K",T,1)))
        a(f"buffer_store_dwordx4 {vr(PK+4*T,4)}, v{vKf}, {WS}, s{S_T1 if T>>1 else S_T0} offen offset:{(T&1)*128} sc1")
    for b in range(2):
        for f in range(2):
            d = PK + 16 + 4*(2*b+f)
            a.ext(pack(d, A("V",2*b,f), A("V",2*b+1,f)))
            a(f"buffer_store_dwordx4 {vr(d,4)}, v{vVf}, {WS}, s{S_T1 if b else S_T0} offen offset:{2048+f*256} sc1")
    a(f"""
    s_mov_b32 s{SRD_D}, s{P+12}
    s_mov_b32 s{SRD_D+1}, s{P+13}
    s_movk_i32 s{SRD_D+2}, 2048
    s_lshl_b32 s{S_T0}, s{S_RB}, 4
    s_add_u32 s{S_T0}, s{S_T0}, s{S_HP}
    s_lshl_b32 s{S_T0}, s{S_T0}, 2
    s_add_u32 s{S_T0}, s{S_T0}, s{S_WAVE}
    s_lshl_b32 s{S_T1}, s{S_T0}, 12
    v_lshlrev_b32 v{vt+4}, 5, v0
    buffer_load_dwordx4 {vr(GW,4)}, v{vt+4}, {DS}, 0 offen
    buffer_load_dwordx4 {vr(GW+4,4)}, v{vt+4}, {DS}, 0 offen offset:16
    buffer_load_dwordx4 {vr(GX,4)}, v{vt+4}, {XS}, s{S_T1} offen
    buffer_load_dwordx4 {vr(GX+4,4)}, v{vt+4}, {XS}, s{S_T1} offen offset:16
    buffer_load_dwordx4 {vr(GX+8,4)}, v{vt+4}, {XS}, s{S_T1} offen offset:2048
    buffer_load_dwordx4 {vr(GX+12,4)}, v{vt+4}, {XS}, s{S_T1} offen offset:2064
    s_lshl_b32 s{S_T2}, s{S_WAVE}, 1
    s_and_b32 s{S_T2}, s{S_T2}, 2
    s_lshl_b32 s{S_T1}, s{S_HH}, 2
    s_add_u32 s{S_T2}, s{S_T2}, s{S_T1}
    s_lshl_b32 s{S_T2}, s{S_T2}, 11
    v_add_u32 v{vt+4}, s{S_T2}, v{vVf}
    """)
    for i in range(32): a(f"v_mul_f32 v{A('Q',0,0)+i}, s{S_T3}, v{A('Q',0,0)+i}")
    for T in range(4):
        d = PK + 32 + 4*T
        a.ext(pack(d, A("Q",T,0), A("Q",T,1)))
        a(f"ds_write_b128 v{vt+4}, {vr(d,4)} offset:{LDS_Q + (T>>1)*2048 + (T&1)*256}")
    a(f"""
    v_mov_b32 v{vt+5}, 0
    v_mov_b32 v{vt+7}, {LDS_MISC}
    ds_write_b32 v{vt+7}, v{vt+5}
    ds_write_b32 v{vt+7}, v{vt+5} offset:4
    """)
    a("s_waitcnt vmcnt(0) lgkmcnt(0)\ns_barrier")
    stamp()
    a(f"s_cmp_lg_u32 s{S_WAVE}, 0\ns_cbranch_scc1 Lepi_a1")
    flag_store(a, vt+4, 1)
    a("Lepi_a1:")
    z = [GX+16+8, GX+16+9]
    for r in range(2):
        a(f"v_mov_b32 v{z[r]}, 0")
    for i in range(8):
        for r in range(2): a(f"v_dot2c_f32_bf16 v{z[r]}, v{GX+8*r+i}, v{GW+i}")
    a("s_nop 2")
    for dpp in ("row_shr:1", "row_shr:2", "row_shr:4", "row_shr:8", "row_bcast:15 row_mask:0xa", "row_bcast:31 row_mask:0xc"):
        for r in range(2): a(f"v_add_f32_dpp v{z[r]}, v{z[r]}, v{z[r]} {dpp}" + ("" if "row_mask" in dpp else " row_mask:0xf") + " bank_mask:0xf")
        a("s_nop 0")
    a(f"""
    v_mul_f32 v{z[0]}, {f32(-math.log2(math.e))}, v{z[0]}
    v_mul_f32 v{z[1]}, {f32(-math.log2(math.e))}, v{z[1]}
    v_exp_f32 v{z[0]}, v{z[0]}
    v_exp_f32 v{z[1]}, v{z[1]}
    s_lshl_b32 s{S_T0}, s{S_T0}, 3
    v_add_f32 v{z[0]}, 1.0, v{z[0]}
    v_add_f32 v{z[1]}, 1.0, v{z[1]}
    v_rcp_f32 v{z[0]}, v{z[0]}
    v_rcp_f32 v{z[1]}, v{z[1]}
    s_add_u32 s{S_T0}, s{S_T0}, {WS_G}
    v_mov_b32 v{vt+4}, 0
    s_mov_b32 s{S_T1}, 0
    s_brev_b32 s{S_T2}, 1
    s_mov_b64 exec, s[{S_T1}:{S_T2}]
    buffer_store_dwordx2 {vr(z[0],2)}, v{vt+4}, {WS}, s{S_T0} offen sc1
    s_mov_b64 exec, -1
    s_branch Lepi_join
    """)
    assert S_T2 == S_T1 + 1 and S_T1 % 2 == 0
    Kp = lambda T: 112 + 4*(T+1)
    Qp = lambda T: 132 + 4*T
    Vf = lambda f, T: 148 + 10*f + 2*(T+1)
    Mown = 168; Mprev = 172; bones = 176
    a("Lepi_b:")
    a.ext(pack(Kp(3), A("K",3,0), A("K",3,1)))
    a.ext(pack(vt+4, A("V",3,0), A("V",3,1)))
    a(f"""
    s_lshl_b32 s{S_T0}, s{S_FIDX}, 1
    s_add_u32 s{S_T0}, s{S_T0}, s{S_HH}
    s_lshl_b32 s{S_T0}, s{S_T0}, 11
    s_add_u32 s{S_T0}, s{S_T0}, {WS_HALO}
    s_lshl_b32 s{S_T1}, s{S_HH}, 11
    v_add_u32 v{vKf}, s{S_T1}, v{vL16}
    s_cmp_eq_u32 s{S_RQ}, 0
    s_cbranch_scc1 Lepi_b0
    buffer_store_dwordx4 {vr(Kp(3),4)}, v{vL16}, {WS}, s{S_T0} offen sc1
    buffer_store_dwordx4 {vr(vt+4,4)}, v{vL16}, {WS}, s{S_T0} offen offset:1024 sc1
    s_branch Lepi_b1
    Lepi_b0:
    ds_write_b128 v{vKf}, {vr(Kp(3),4)} offset:{LDS_HALO}
    ds_write_b128 v{vKf}, {vr(vt+4,4)} offset:{LDS_HALO+1024}
    Lepi_b1:
    """)
    for T in range(3): a.ext(pack(Kp(T), A("K",T,0), A("K",T,1)))
    for T in range(4):
        for f in range(2):
            a(f"v_cvt_pk_bf16_f32 v{Vf(f,T)}, v{A('V',T,f)}, v{A('V',T,f)+1}")
            a(f"v_cvt_pk_bf16_f32 v{Vf(f,T)+1}, v{A('V',T,f)+2}, v{A('V',T,f)+3}")
    for i in range(32): a(f"v_mul_f32 v{A('Q',0,0)+i}, s{S_T3}, v{A('Q',0,0)+i}")
    for T in range(4): a.ext(pack(Qp(T), A("Q",T,0), A("Q",T,1)))
    a("s_waitcnt vmcnt(0) lgkmcnt(0)\ns_barrier")
    if cfg.stamps: a("s_nop 0")
    a(f"""
    s_mov_b32 s{S_T1}, {BIG}
    v_lshlrev_b32 v{vt+4}, 2, v{g_}
    v_sub_u32 v{vt+4}, v{c_}, v{vt+4}              ; c - 4g
    v_mov_b32 v{vt+5}, s{S_T1}
    """)
    for b in range(4):
        a(f"""
        v_subrev_u32 v{vt+6}, {b}, v{vt+4}
        v_and_b32 v{vt+7}, 0x80000001, v{vt+6}
        v_cmp_eq_u32 vcc, 0, v{vt+7}
        v_cmp_eq_u32 s[{S_T1}:{S_T2}], v{vt+7}, v{vVf}
        v_mov_b32 v{bones+b}, 0x3f803f80
        v_cndmask_b32 v{Mown+b}, v{vt+5}, 0, vcc
        v_cndmask_b32 v{Mprev+b}, v{vt+5}, 0, s[{S_T1}:{S_T2}]
        """.replace(f"v_cmp_eq_u32 s[{S_T1}:{S_T2}], v{vt+7}, v{vVf}", f"v_cmp_eq_u32 s[{S_T1}:{S_T2}], v{vt+7}, v{vVf}"))
    idx = [i for i, l in enumerate(a.lines) if l.strip() == f"v_mov_b32 v{vt+5}, s{S_T1}"][-1]
    a.lines.insert(idx+1, f"    v_bfrev_b32 v{vVf}, 1")
    a(f"""
    s_lshl_b32 s{S_OOFF}, s{S_HEAD}, 7
    s_lshl_b32 s{S_T1}, s{S_RB}, 3
    s_add_u32 s{S_OOFF}, s{S_OOFF}, s{S_T1}
    s_lshl_b32 s{S_T1}, s{S_RQ}, 2
    s_add_u32 s{S_OOFF}, s{S_OOFF}, s{S_T1}
    s_lshl_b32 s{S_OOFF}, s{S_OOFF}, 10
    s_add_u32 s{S_OOFF}, s{S_OOFF}, {WS_O}
    s_cmp_eq_u32 s{S_RQ}, 0
    s_cbranch_scc1 Lepi_b2
    ds_read_b128 {vr(Kp(-1),4)}, v{vKf} offset:{LDS_HALO}
    ds_read_b64 {vr(Vf(0,-1),2)}, v{vKf} offset:{LDS_HALO+1024}
    ds_read_b64 {vr(Vf(1,-1),2)}, v{vKf} offset:{LDS_HALO+1024+8}
    Lepi_b2:
    """)
    btiles(a, [(1, 16), (2, 48), (3, 80)], Kp, Qp, Vf, Mown, Mprev, bones, vL16, S_OOFF)
    a(f"s_cmp_eq_u32 s{S_RQ}, 0\ns_cbranch_scc1 Lepi_join\ns_waitcnt lgkmcnt(0)")
    btiles(a, [(0, 56)], Kp, Qp, Vf, Mown, Mprev, bones, vL16, S_OOFF)
    a("Lepi_join:")
    a(f"""
    s_lshl_b32 s{S_T1}, s{S_HH}, 1
    s_add_u32 s{S_T1}, s{S_T1}, s{S_RQ}
    s_lshl_b32 s{S_T1}, s{S_T1}, 12
    v_add_u32 v{vt+4}, s{S_T1}, v{vL16}
    ds_read_b128 {vr(Q[0],4)}, v{vt+4} offset:{LDS_Q}
    ds_read_b128 {vr(Q[0]+4,4)}, v{vt+4} offset:{LDS_Q+1024}
    ds_read_b128 {vr(Q[1],4)}, v{vt+4} offset:{LDS_Q+2048}
    ds_read_b128 {vr(Q[1]+4,4)}, v{vt+4} offset:{LDS_Q+3072}
    v_bfe_u32 v{vt+4}, v0, 2, 1
    v_cmp_eq_u32 vcc, 0, v{vt+4}
    v_mov_b32 v{vt+5}, 0x3f803f80
    v_and_b32 v{vt+6}, 1, v0
    v_cndmask_b32 v{AONES}, 0, v{vt+5}, vcc
    v_cmp_eq_u32 vcc, 0, v{vt+6}
    v_mov_b32 v{AONES+1}, v{AONES}
    v_xor_b32 v{AONES+2}, v{vt+5}, v{AONES}
    v_mov_b32 v{AONES+3}, v{AONES+2}
    v_mov_b32 v{AIDX}, 0xeeeeeeee
    v_mov_b32 v{vt+4}, 0x44444444
    v_cndmask_b32 v{AIDX}, v{AIDX}, v{vt+4}, vcc
    v_add_u32 v{VKL}, 4096, v{vL16}
    v_lshrrev_b32 v{vt+4}, 3, v0
    v_lshlrev_b32 v{vt+4}, 11, v{vt+4}
    v_lshlrev_b32 v{vt+5}, 1, v{g_}
    v_and_b32 v{vt+6}, 7, v0
    v_xor_b32 v{vt+5}, v{vt+5}, v{vt+6}
    v_lshl_add_u32 v{VWO}, v{vt+5}, 4, v{vt+4}
    v_add_u32 v{VWO+1}, {16384-1024}, v{VWO}
    v_add_u32 v{VWO+2}, {2*(16384-1024)}, v{VWO}
    v_add_u32 v{VWO+3}, {3*(16384-1024)}, v{VWO}
    s_lshr_b32 s{S_RB3}, s{S_XCD}, 1
    s_lshl_b32 s{S_RB3}, s{S_RB3}, 2
    s_and_b32 s{S_T1}, s{S_J}, 3
    s_add_u32 s{S_RB3}, s{S_RB3}, s{S_T1}
    s_and_b32 s{S_CB3}, s{S_XCD}, 1
    s_lshl_b32 s{S_CB3}, s{S_CB3}, 3
    s_lshr_b32 s{S_T1}, s{S_J}, 2
    s_add_u32 s{S_CB3}, s{S_CB3}, s{S_T1}
    s_mov_b32 s{SRD_D}, s{P+10}
    s_mov_b32 s{SRD_D+1}, s{P+11}
    s_mov_b32 s{SRD_D+2}, 0x200000
    s_lshl_b32 s{S_WOFF}, s{S_WAVE}, 18
    s_lshl_b32 s{S_T1}, s{S_CB3}, 7
    s_add_u32 s{S_WOFF}, s{S_WOFF}, s{S_T1}
    s_lshl_b32 s{S_WM0}, s{S_WAVE}, 14
    s_add_u32 s{S_WEND}, s{S_WM0}, 16384
    s_min_u32 s{S_WEND}, s{S_WEND}, {LDS_COMB}
    s_lshl_b32 s{S_KV0}, s{S_HEAD}, 1
    s_add_u32 s{S_KV0}, s{S_KV0}, s{S_BR}
    s_lshl_b32 s{S_KV0}, s{S_KV0}, 17
    s_add_u32 s{S_KV0}, s{S_KV0}, {WS_KV + 4096}
    s_sub_u32 s{S_KV0}, s{S_KV0}, 4096
    s_cmp_eq_u32 s{S_BR}, 0
    s_cselect_b32 s{S_SLOW}, 99, 10
    """)
    att_zero(a)
    a(f"s_cmp_lg_u32 s{S_WAVE}, 0\ns_cbranch_scc1 Lsync1")
    a(f"v_and_b32 v{vt+4}, 15, v0\ns_lshl_b32 s{S_T1}, s{S_HP}, 4")
    poll(a, vt+5, vt+4, f"s{S_T1}", 1, "Lpoll1")
    a("Lsync1:\ns_waitcnt lgkmcnt(0)\ns_barrier")
    stamp()
    a(f"""
    s_cmp_lt_u32 s{S_WAVE}, 4
    s_cbranch_scc1 Latt_go
    s_cmp_lg_u32 s{S_RQ}, 0
    s_cbranch_scc1 Latt_go
    s_cmp_eq_u32 s{S_RB}, 0
    s_cbranch_scc1 Lhalo0
    s_sub_u32 s{S_T0}, s{S_T0}, 4096
    buffer_load_dwordx4 {vr(Kp(-1),4)}, v{vL16}, {WS}, s{S_T0} offen sc1
    buffer_load_dwordx2 {vr(Vf(0,-1),2)}, v{vL16}, {WS}, s{S_T0} offen offset:1024 sc1
    buffer_load_dwordx2 {vr(Vf(1,-1),2)}, v{vL16}, {WS}, s{S_T0} offen offset:1032 sc1
    s_branch Lhalo1
    Lhalo0:
    """)
    for r in [Kp(-1)+i for i in range(4)] + [Vf(0,-1), Vf(0,-1)+1, Vf(1,-1), Vf(1,-1)+1]: a(f"v_mov_b32 v{r}, 0")
    for b in range(4): a(f"v_mov_b32 v{Mprev+b}, {BIG}")
    a("Lhalo1:")
    att_prologue_loads(a, vL16)
    a("s_waitcnt vmcnt(10)")
    btiles(a, [(0, 56)], Kp, Qp, Vf, Mown, Mprev, bones, vL16, S_OOFF)
    a("s_waitcnt vmcnt(1)\ns_branch Latt_go2\nLatt_go:")
    att_prologue_loads(a, vL16)
    a("Latt_go2:")
    att_loop(a, cfg, vt, vL16, False, "Latt")
    stamp()
    a("Lcomb:")
    a(f"""
    s_mul_i32 s{S_T1}, s{S_WAVE}, 4352
    s_add_u32 s{S_T1}, s{S_T1}, {LDS_COMB}
    s_xor_b32 s{S_T2}, s{S_WAVE}, 4
    s_mul_i32 s{S_T2}, s{S_T2}, 4352
    s_add_u32 s{S_T2}, s{S_T2}, {LDS_COMB}
    v_add_u32 v{vt}, s{S_T1}, v{vL16}
    v_add_u32 v{vt+1}, s{S_T2}, v{vL16}
    v_lshlrev_b32 v{vt+2}, 2, v0
    v_add_u32 v{vt+3}, s{S_T2}, v{vt+2}
    v_add_u32 v{vt+2}, s{S_T1}, v{vt+2}
    s_cmp_lg_u32 s{S_WAVE}, 0
    s_cbranch_scc1 Lcomb_np
    v_and_b32 v{vt+4}, 15, v0
    v_lshlrev_b32 v{vt+4}, 4, v{vt+4}
    """)
    poll(a, vt+5, vt+4, f"s{S_RB3}", 2, "Lpoll2")
    a(f"""
    Lcomb_np:
    s_nop 3
    v_add_f32 v{L[0]}, v{L[0]}, v{L[0]+1}
    v_add_f32 v{L[1]}, v{L[1]}, v{L[1]+1}
    s_cmp_eq_u32 s{S_BR}, 0
    s_cbranch_scc1 Lcomb0
    """)
    for kh in (1, 0):
        snd = 1 - kh
        for i in range(4): a(f"ds_write_b128 v{vt}, {vr(O[snd]+4*i,4)} offset:{i*1024}")
        a(f"ds_write_b32 v{vt+2}, v{L[snd]} offset:4096")
        if kh == 1:
            for i in range(16): a(f"v_mov_b32 v{O[0]+i}, v{O[1]+i}")
            a(f"v_mov_b32 v{L[0]}, v{L[1]}")
            a("s_branch Lcomb1\nLcomb0:")
    a("Lcomb1:\ns_waitcnt lgkmcnt(0)\ns_barrier")
    for i in range(4): a(f"ds_read_b128 {vr(S[0]+4*i,4)}, v{vt+1} offset:{i*1024}")
    a(f"ds_read_b32 v{S[1]}, v{vt+3} offset:4096")
    ACCB = 16; ACCA = 48; WF = [80, 96, 112]; RINGS = [128, 136, 144, 152, 160, 168, 196, 204]; VTB = 212; VTA0 = 216; VTA1 = 220; VG = 224
    a(f"""
    s_and_b32 s{S_T1}, s{S_WAVE}, 3
    s_lshl_b32 s{S_T1}, s{S_T1}, 1
    s_lshl_b32 s{S_T2}, s{S_RB3}, 3
    s_add_u32 s{S_T1}, s{S_T1}, s{S_T2}
    s_lshl_b32 s{S_KOFF}, s{S_BR}, 11
    s_add_u32 s{S_KOFF}, s{S_KOFF}, s{S_T1}
    s_lshl_b32 s{S_KOFF}, s{S_KOFF}, 10
    s_add_u32 s{S_KOFF}, s{S_KOFF}, {WS_O}
    """)
    def ldo(n):
        r = RINGS[n % 8]
        return [f"buffer_load_dwordx4 {vr(r,4)}, v{vL16}, {WS}, s{S_KOFF} offen sc1",
                f"buffer_load_dwordx4 {vr(r+4,4)}, v{vL16}, {WS}, s{S_KOFF} offen offset:1024 sc1",
                f"s_add_u32 s{S_KOFF}, s{S_KOFF}, {128*1024}"]
    for n in range(8): a.ext(ldo(n))
    a(f"""
    s_lshl_b32 s{S_OOFF}, s{S_HEAD}, 7
    s_lshl_b32 s{S_T1}, s{S_RB}, 3
    s_add_u32 s{S_OOFF}, s{S_OOFF}, s{S_T1}
    s_lshl_b32 s{S_T1}, s{S_RQ}, 2
    s_add_u32 s{S_OOFF}, s{S_OOFF}, s{S_T1}
    s_lshl_b32 s{S_T1}, s{S_BR}, 1
    s_add_u32 s{S_OOFF}, s{S_OOFF}, s{S_T1}
    s_lshl_b32 s{S_OOFF}, s{S_OOFF}, 10
    s_add_u32 s{S_OOFF}, s{S_OOFF}, {WS_O + (4<<20)}
    v_and_b32 v{vt}, 15, v0
    v_lshlrev_b32 v{vt}, 4, v{vt}
    v_bfe_u32 v{vt+1}, v0, 4, 1
    v_lshl_add_u32 v{vt}, v{vt+1}, 10, v{vt}
    v_lshrrev_b32 v{vt+1}, 5, v0
    v_lshl_add_u32 v{vt}, v{vt+1}, 8, v{vt}
    s_waitcnt lgkmcnt(0)
    v_add_f32 v{L[0]}, v{L[0]}, v{S[1]}
    v_rcp_f32 v{L[0]+1}, v{L[0]}
    v_mul_f32 v{vt+2}, 0, v{L[0]}
    """)
    for i in range(16): a(f"v_add_f32 v{O[0]+i}, v{O[0]+i}, v{S[0]+i}")
    for i in range(16): a(f"v_fmac_f32 v{vt+2}, 0, v{O[0]+i}")
    for i in range(16): a(f"v_mul_f32 v{O[0]+i}, v{O[0]+i}, v{L[0]+1}")
    for i in range(8): a(f"v_cvt_pk_bf16_f32 v{PP[0]+i}, v{O[0]+2*i}, v{O[0]+2*i+1}")
    a(f"""
    buffer_store_dwordx4 {vr(PP[0],4)}, v{vt}, {WS}, s{S_OOFF} offen sc1
    buffer_store_dwordx4 {vr(PP[0]+4,4)}, v{vt}, {WS}, s{S_OOFF} offen offset:512 sc1
    v_cmp_nle_f32 vcc, {f32(2.0**-60)}, v{L[0]}
    v_cmp_neq_f32 s[{S_T1}:{S_T2}], 0, v{vt+2}
    v_mov_b32 v{vt+3}, {LDS_MISC}
    s_or_b64 vcc, vcc, s[{S_T1}:{S_T2}]
    s_cbranch_vccz Lcomb_ok
    v_mov_b32 v{vt+4}, 1
    ds_write_b32 v{vt+3}, v{vt+4} offset:4
    Lcomb_ok:
    """)
    a(f"""
    v_bfe_u32 v{vt+4}, v0, 2, 2                    ; r4
    v_lshrrev_b32 v{vt+5}, 4, v0                   ; g
    v_bfe_u32 v{vt+6}, v0, 3, 2                    ; fk
    v_and_b32 v{vt+7}, 3, v0
    v_lshlrev_b32 v{vt+7}, 3, v{vt+7}
    v_lshl_add_u32 v{vt+7}, v{vt+6}, 5, v{vt+7}
    v_lshl_add_u32 v{vt+7}, v{vt+4}, 7, v{vt+7}    ; r4*128 + fk*32 + c4*8
    s_lshl_b32 s{S_T1}, s{S_BR}, 16
    v_lshl_add_u32 v{VTB}, v{vt+5}, 9, v{vt+7}
    v_add_u32 v{VTB}, s{S_T1}, v{VTB}
    v_and_b32 v{vt+4}, 1, v{vt+5}
    v_lshl_add_u32 v{vt+7}, v{vt+4}, 9, v{vt+7}
    v_lshrrev_b32 v{vt+4}, 1, v{vt+5}
    v_lshl_add_u32 v{vt+7}, v{vt+4}, 11, v{vt+7}
    v_add_u32 v{VTA1}, s{S_T1}, v{vt+7}
    s_lshl_b32 s{S_T1}, s{S_BR}, 14
    s_add_u32 s{S_T1}, s{S_T1}, 131072
    v_add_u32 v{VTA0}, s{S_T1}, v{vt+7}
    """)
    for base in (VTB, VTA0, VTA1):
        for f in range(1, 4): a(f"v_xor_b32 v{base+f}, {32*f}, v{base}")
    a("s_waitcnt vmcnt(0) lgkmcnt(0)\ns_barrier")
    a(f"ds_read_b32 v{vt+4}, v{vt+3} offset:4")
    def dma_block():
        return [f"buffer_load_dwordx4 v{VWO+i}, {DS}, s{S_WOFF} offen offset:{i*1024} lds" for i in range(4)]
    a(f"""
    s_waitcnt lgkmcnt(0)
    v_readfirstlane_b32 s{S_T1}, v{vt+4}
    s_cmp_eq_u32 s{S_SLOW}, 77
    s_cselect_b32 s{S_T1}, 0, s{S_T1}
    s_cmp_lg_u32 s{S_T1}, 0
    s_cbranch_scc1 Lslow
    s_cmp_lg_u32 s{S_WAVE}, 0
    s_cbranch_scc1 Lp3_nf
    """)
    flag_store(a, vt+4, 3)
    a(f"""
    Lp3_nf:
    s_lshl_b32 s{S_T1}, s{S_CB3}, 7
    s_cmp_lg_u32 s{S_WAVE}, 7
    s_cbranch_scc1 Lp3_n31
    s_mov_b32 m0, {31*4096}
    s_add_u32 s{S_WOFF}, s{S_T1}, {31*65536}
    """)
    a.ext(dma_block())
    a(f"""
    Lp3_n31:
    s_mov_b32 s{SRD_D}, s{P+4}
    s_mov_b32 s{SRD_D+1}, s{P+5}
    s_and_b32 s{S_T2}, s{S_WAVE}, 3
    s_lshl_b32 s{S_WM0}, s{S_BR}, 4
    s_add_u32 s{S_WM0}, s{S_WM0}, s{S_T2}
    s_lshl_b32 s{S_WOFF}, s{S_WM0}, 16
    s_add_u32 s{S_WOFF}, s{S_WOFF}, s{S_T1}
    s_lshl_b32 s{S_WM0}, s{S_WM0}, 12
    s_lshl_b32 s{S_WEND}, s{S_WAVE}, 12
    s_add_u32 s{S_WEND}, s{S_WEND}, 131072
    """)
    stamp()
    vm = []
    def issue(tag, lines):
        for l in lines:
            a(l)
            if l.startswith("buffer_"): vm.append(tag)
    def waitvm(tag):
        last = max(i for i, t in enumerate(vm) if t == tag)
        return len(vm) - 1 - last
    def dma_round():
        return [f"s_mov_b32 m0, s{S_WM0}", f"s_add_u32 s{S_WOFF}, s{S_WOFF}, {4*65536}"] + dma_block() + [f"s_add_u32 s{S_WM0}, s{S_WM0}, {4*4096}"]
    def rdw(n):
        b = WF[n % 3]
        out = []
        for f in range(4):
            for jh in range(2):
                if n < 16: adr, off = VTB + f, n*4096 + jh*2048
                elif n < 20: adr, off = VTA0 + f, (n-16)*4096 + jh*1024
                else: adr, off = VTA1 + f, (n-20)*4096 + jh*1024
                out.append(f"ds_read_b64_tr_b16 {vr(b+4*f+2*jh,2)}, v{adr} offset:{off}")
        return out
    a.ext(rdw(0)); a.ext(rdw(1))
    for n in range(32):
        part = n // 16
        accb = ACCA if part else ACCB
        first = n % 16 == 0
        if n in (4, 8):
            a("s_barrier")
            if n == 4: issue("D0", [f"s_mov_b32 m0, s{S_WEND}", "s_nop 0"] + dma_block())
            issue(f"D{n//4}", dma_round())
        if n == 12:
            a(f"s_cmp_lg_u32 s{S_WAVE}, 0\ns_cbranch_scc1 Lp3_np\nv_and_b32 v{vt+4}, 15, v0\nv_lshlrev_b32 v{vt+4}, 4, v{vt+4}")
            poll(a, vt+5, vt+4, f"s{S_RB3}", 3, "Lpoll3")
            a("Lp3_np:\ns_waitcnt vmcnt(0)\ns_barrier")
            stamp()
            vm.clear()
            a(f"s_add_u32 s{S_KOFF}, s{S_KOFF}, {(4<<20) - 16*128*1024}")
            for m in range(4): issue(f"L{16+m}", ldo(16+m))
            issue("D3", dma_round())
            a(f"""
            s_lshl_b32 s{S_T1}, s{S_RB3}, 2
            s_and_b32 s{S_T2}, s{S_WAVE}, 3
            s_add_u32 s{S_T1}, s{S_T1}, s{S_T2}
            s_lshl_b32 s{S_T1}, s{S_T1}, 7
            s_add_u32 s{S_T1}, s{S_T1}, {WS_G}
            v_and_b32 v{vt+4}, 15, v0
            v_lshlrev_b32 v{vt+4}, 2, v{vt+4}
            """)
            issue("G", [f"buffer_load_dword v{VG}, v{vt+4}, {WS}, s{S_T1} offen sc1", f"buffer_load_dword v{VG+1}, v{vt+4}, {WS}, s{S_T1} offen offset:64 sc1"])
        if n == 24:
            a("s_barrier")
        w = []
        if f"L{n}" in vm: w.append(f"vmcnt({waitvm(f'L{n}')})")
        w.append("lgkmcnt(8)" if n < 31 else "lgkmcnt(0)")
        a("s_waitcnt " + " ".join(w))
        r = RINGS[n % 8]; b = WF[n % 3]
        M = [mfma16(accb + 4*(T*4+f), b+4*f, r+4*T, 0 if first else None) for T in range(2) for f in range(4)]
        nxt = rdw(n+2) if n + 2 < 32 else []
        for i, m_ in enumerate(M):
            a(m_)
            if i < len(nxt): a(nxt[i])
        if n + 8 < 32 and not (8 <= n < 12):
            issue(f"L{n+8}", ldo(n+8))
    stamp()
    a(f"""
    s_mov_b32 s{SRD_X}, s{P+14}
    s_mov_b32 s{SRD_X+1}, s{P+15}
    s_and_b32 s{S_T1}, s{S_WAVE}, 3
    s_add_u32 s{S_T1}, s{S_T1}, 12
    s_lshl_b32 s{S_T1}, s{S_T1}, 12
    s_lshl_b32 s{S_T2}, s{S_BR}, 16
    s_add_u32 s{S_T2}, s{S_T2}, s{S_T1}
    s_xor_b32 s{S_T1}, s{S_T2}, 65536              ; partner's
    v_add_u32 v{vt}, s{S_T2}, v{vL16}
    v_add_u32 v{vt+1}, s{S_T1}, v{vL16}
    v_sub_f32 v{VG+2}, 1.0, v{VG}
    v_sub_f32 v{VG+3}, 1.0, v{VG+1}
    """)
    def mix(T):
        for i in range(16): a(f"v_mul_f32 v{ACCB+16*T+i}, v{ACCB+16*T+i}, v{VG+2+T}")
        for i in range(16): a(f"v_fmac_f32 v{ACCB+16*T+i}, v{ACCA+16*T+i}, v{VG+T}")
    a(f"s_cmp_eq_u32 s{S_BR}, 0\ns_cbranch_scc1 Lfin0")
    for kh in (1, 0):
        snd = 1 - kh
        mix(snd)
        for i in range(4): a(f"ds_write_b128 v{vt}, {vr(ACCB+16*snd+4*i,4)} offset:{i*1024}")
        mix(kh)
        if kh == 1:
            for i in range(16): a(f"v_mov_b32 v{ACCB+i}, v{ACCB+16+i}")
            a("s_branch Lfin1\nLfin0:")
    a(f"""
    Lfin1:
    s_lshl_b32 s{S_T1}, s{S_RB3}, 3
    s_and_b32 s{S_T2}, s{S_WAVE}, 3
    s_lshl_b32 s{S_T2}, s{S_T2}, 1
    s_add_u32 s{S_T1}, s{S_T1}, s{S_T2}
    s_add_u32 s{S_T1}, s{S_T1}, s{S_BR}
    s_lshl_b32 s{S_T1}, s{S_T1}, 15
    s_lshl_b32 s{S_T2}, s{S_CB3}, 7
    s_add_u32 s{S_T1}, s{S_T1}, s{S_T2}
    v_and_b32 v{vt+2}, 15, v0
    v_lshlrev_b32 v{vt+2}, 11, v{vt+2}
    v_bfe_u32 v{vt+3}, v0, 4, 1
    v_lshl_add_u32 v{vt+2}, v{vt+3}, 5, v{vt+2}
    v_lshrrev_b32 v{vt+3}, 5, v0
    v_lshl_add_u32 v{vt+2}, v{vt+3}, 4, v{vt+2}
    s_waitcnt lgkmcnt(0)
    s_barrier
    """)
    for i in range(4): a(f"ds_read_b128 {vr(ACCA+4*i,4)}, v{vt+1} offset:{i*1024}")
    for i in range(4):
        a(f"s_waitcnt lgkmcnt({3-i})")
        for j in range(4): a(f"v_add_f32 v{ACCB+4*i+j}, v{ACCB+4*i+j}, v{ACCA+4*i+j}")
    for i in range(8): a(f"v_cvt_pk_bf16_f32 v{WF[0]+i}, v{ACCB+2*i}, v{ACCB+2*i+1}")
    a("s_nop 1")
    for fp in range(2):
        for d in range(2): a(f"v_permlane16_swap_b32 v{WF[0]+4*fp+d}, v{WF[0]+4*fp+2+d}")
    a("s_nop 0")
    for fp in range(2): a(f"buffer_store_dwordx4 {vr(WF[0]+4*fp,4)}, v{vt+2}, {XS}, s{S_T1} offen offset:{64*fp}")
    if cfg.stamps:
        a("s_waitcnt vmcnt(0)")
        stamp()

def emit_cold(a, cfg, vt, vL16):
    a(f"""
    Lflag2:
    v_mov_b32 v{vt}, {LDS_MISC}
    v_mov_b32 v{vt+1}, 1
    s_mov_b64 exec, 1
    ds_add_rtn_u32 v{vt+1}, v{vt}, v{vt+1}
    s_waitcnt lgkmcnt(0)
    v_readfirstlane_b32 s{S_T0}, v{vt+1}
    s_mov_b64 exec, -1
    s_cmp_lg_u32 s{S_T0}, 3
    s_cbranch_scc1 Lflag2_ret
    """)
    flag_store(a, vt, 2)
    a("s_branch Lflag2_ret")
    a("Lslow:")
    a(f"s_mov_b32 s{S_SLOW}, 77")
    a("s_branch Lcomb")
```

```python
import sys, math
sys.path.insert(0, "gen")
from asmlib import *

NAME = "gated_mix__softmax_full_mha__sliding_local_dilated__prompt_kernel"
WS_KV = 8 << 20
WS_O = 0
WS_HALO = 16 << 20
WS_G = 17 << 20
WS_TS = 18 << 20
WS_DBG = 20 << 20
WS_SIZE = 32 << 20
QSCALE = math.log2(math.e) / math.sqrt(32.0)

import struct
def f32(x): return "0x%08x" % struct.unpack("<I", struct.pack("<f", x))[0]

class Cfg:
    stop_after = None
    stamps = False
    prio = "quarter"
    pf_mode = 1
    rot = False
    diag = False
    pf0 = 2
    pf1 = 0
    pfskip = 0
    D = 4
    ubar = False
    pfpos = 20
    dpos = (4, 8, 12, 16)
    def __init__(self, **kw):
        for k, v in kw.items(): setattr(self, k, v)

S_WG = 2
SRD_X = 4
SRD_D = 8
SRD_WS = 12
SRD_DBG = 16
S_WAVE = 20; S_HP = 21; S_RB = 22; S_XCD = 23; S_J = 24
S_T0 = 25; S_T1 = 26; S_T2 = 27; S_T3 = 28
S_OFF = 29
S_BASE = 30
S_STR = 31
S_CNT = 32
S_M0 = 33
S_M0STEP = 34; S_M0MASK = 35; S_M0BASE = 36
S_IT = 37
S_PFOFF = 38; S_PFCNT = 39; S_PFBASE = 40
S_PFSEL = 3
S_RQ = 41; S_HH = 42; S_BR = 43
S_PTR = 44
S_TS = 64

def gen(cfg):
    a = Asm()
    nstamp = [0]
    def stamp_lines(cyc=False):
        if not cfg.stamps: return []
        out = []
        for op in (["s_memrealtime", "s_memtime"] if cyc else ["s_memrealtime"]):
            i = nstamp[0]; nstamp[0] += 1
            assert i < 32
            out += [f"{op} s[96:97]", "s_waitcnt lgkmcnt(0)", f"s_mov_b32 s{S_TS+i}, s96"]
        return out
    def stamp(cyc=False): a.ext(stamp_lines(cyc))
    V = Alloc(1, 256)
    lane = 0
    vt = V("tmp", 8, 4)
    vL16 = V("l16")
    a(f"s_cmp_ge_u32 s{S_WG}, 256\ns_cbranch_scc1 Lend")
    stamp()
    a(f"""
    s_load_dwordx16 s[{S_PTR}:{S_PTR+15}], s[0:1], 0
    s_load_dwordx4 s[{S_PTR+16}:{S_PTR+19}], s[0:1], 64
    v_lshrrev_b32 v{vt}, 6, v0
    v_and_b32 v0, 63, v0
    s_and_b32 s{S_XCD}, s{S_WG}, 7
    v_readfirstlane_b32 s{S_WAVE}, v{vt}
    s_lshr_b32 s{S_J}, s{S_WG}, 3
    s_and_b32 s{S_T0}, s{S_XCD}, 3
    s_lshl_b32 s{S_HP}, s{S_T0}, 2
    s_lshr_b32 s{S_T1}, s{S_J}, 3
    s_add_u32 s{S_HP}, s{S_HP}, s{S_T1}
    s_lshr_b32 s{S_RB}, s{S_XCD}, 2
    s_lshl_b32 s{S_RB}, s{S_RB}, 3
    s_and_b32 s{S_T1}, s{S_J}, 7
    s_add_u32 s{S_RB}, s{S_RB}, s{S_T1}
    """)
    if cfg.rot: a(f"s_lshl_b32 s{S_CNT}, s{S_T0}, 2")
    else: a(f"s_mov_b32 s{S_CNT}, 0")
    a(f"""
    v_lshlrev_b32 v{vL16}, 4, v0
    s_and_b32 s{S_RQ}, s{S_WAVE}, 1
    s_bfe_u32 s{S_HH}, s{S_WAVE}, 0x10001
    s_lshr_b32 s{S_BR}, s{S_WAVE}, 2
    """)
    m_p1 = V.mark()
    acc = V("acc", 96, 4)
    fr = [V("fr0", 40, 4), V("fr1", 40, 4)]
    vd = V("vd", 8)
    vpf = V("vpf"); vpfd = V("vpfd")
    vx0 = V("vx0"); vx1 = V("vx1"); vw0 = V("vw0"); vw1 = V("vw1")
    def A(kind, T, f): return acc + 4*(("QKV".index(kind)*4 + T)*2 + f)
    def FX(b, T): return fr[b] + 4*T
    def FW(b, sec, f): return fr[b] + 16 + 4*(sec*2 + f)
    P = S_PTR
    a(f"""
    ; role: waves 0,1 -> x rows ; waves 2..7 -> W sections
    s_sub_u32 s{S_T1}, s{S_WAVE}, 2             ; si
    s_cmp_ge_u32 s{S_WAVE}, 5
    s_cselect_b32 s{S_T2}, 3, 0
    s_sub_u32 s{S_T2}, s{S_T1}, s{S_T2}         ; sec
    s_lshl_b32 s{S_T2}, s{S_T2}, 11
    s_lshl_b32 s{S_T3}, s{S_HP}, 7
    s_add_u32 s{S_T2}, s{S_T2}, s{S_T3}         ; W base = sec*2048 + hp*128
    s_lshl_b32 s{S_T1}, s{S_T1}, 14
    s_add_u32 s{S_T1}, s{S_T1}, 65536           ; W lds base
    s_lshl_b32 s{S_T3}, s{S_RB}, 1
    s_add_u32 s{S_T3}, s{S_T3}, s{S_WAVE}
    s_lshl_b32 s{S_T3}, s{S_T3}, 17             ; x base = (rb*128 + 64w)*2048
    s_lshl_b32 s{S_M0BASE}, s{S_WAVE}, 13       ; x lds base = w*8192
    s_cmp_lt_u32 s{S_WAVE}, 2
    s_cselect_b32 s{S_BASE}, s{S_T3}, s{S_T2}
    s_cselect_b32 s{S_M0BASE}, s{S_M0BASE}, s{S_T1}
    s_mov_b32 s{S_STR}, {64*6144}
    s_cselect_b32 s{S_STR}, 128, s{S_STR}
    s_movk_i32 s{S_M0STEP}, 8192
    s_cselect_b32 s{S_M0STEP}, 16384, s{S_M0STEP}
    s_movk_i32 s{S_M0MASK}, 16383
    s_cselect_b32 s{S_M0MASK}, 65535, s{S_M0MASK}
    s_movk_i32 s{S_T0}, 6144
    s_cselect_b32 s{S_T0}, 2048, s{S_T0}           ; row pitch
    s_cselect_b32 s{S_T1}, 7, 2                 ; swizzle mask on (l>>4)-derived term
    s_cselect_b32 s{S_T2}, 0, 1                 ; swizzle shift
    s_cselect_b32 s{S_T3}, 15, 7                ; prefetch lines per stage - 1
    s_mov_b32 s{S_M0}, 0
    v_lshrrev_b32 v{vt}, 3, v0                  ; l>>3
    v_mul_lo_u32 v{vt}, v{vt}, s{S_T0}
    v_lshrrev_b32 v{vt+1}, 4, v0
    v_lshlrev_b32 v{vt+1}, s{S_T2}, v{vt+1}
    v_and_b32 v{vt+1}, s{S_T1}, v{vt+1}
    v_and_b32 v{vt+2}, 7, v0
    v_xor_b32 v{vt+1}, v{vt+1}, v{vt+2}
    v_lshl_add_u32 v{vd}, v{vt+1}, 4, v{vt}     ; even
    v_xor_b32 v{vd+1}, 64, v{vd}                ; odd
    s_lshl_b32 s{S_T0}, s{S_T0}, 3              ; 8 rows
    s_sub_u32 s{S_T1}, s{S_T0}, 1024            ; step minus imm step
    s_lshl_b32 s{S_T2}, s{S_T1}, 1
    v_add_u32 v{vd+1}, s{S_T1}, v{vd+1}
    v_add_u32 v{vd+2}, s{S_T2}, v{vd}
    v_add_u32 v{vd+3}, s{S_T2}, v{vd+1}
    s_lshl_b32 s{S_T2}, s{S_T0}, 2              ; 32 rows
    v_add_u32 v{vd+4}, s{S_T2}, v{vd}
    v_add_u32 v{vd+5}, s{S_T2}, v{vd+1}
    v_add_u32 v{vd+6}, s{S_T2}, v{vd+2}
    v_add_u32 v{vd+7}, s{S_T2}, v{vd+3}
    ; prefetch voffset: lane*pitch for lane < n, others out of range ; share offset goes to scalar
    s_lshr_b32 s{S_T0}, s{S_T0}, 3
    v_mul_lo_u32 v{vpf}, v0, s{S_T0}
    v_cmp_lt_u32 vcc, s{S_T3}, v0
    v_mov_b32 v{vt+1}, 0x40000000
    s_nop 0
    v_cndmask_b32 v{vpf}, v{vpf}, v{vt+1}, vcc      ; unused lanes out of range
    s_lshr_b32 s{S_T1}, s{S_J}, 3               ; x share index (4 sharers)
    s_and_b32 s{S_T2}, s{S_J}, 7                ; W share index (8 sharers)
    s_cmp_lt_u32 s{S_WAVE}, 2
    s_cselect_b32 s{S_T1}, s{S_T1}, s{S_T2}
    s_add_u32 s{S_T3}, s{S_T3}, 1
    s_mul_i32 s{S_T1}, s{S_T1}, s{S_T3}
    s_mul_i32 s{S_T1}, s{S_T1}, s{S_T0}
    s_add_u32 s{S_PFBASE}, s{S_T1}, s{S_BASE}
    s_mov_b32 s{S_PFCNT}, s{S_CNT}
    s_waitcnt lgkmcnt(0)
    STAMP
    s_mov_b32 s{SRD_X}, s{P}
    s_mov_b32 s{SRD_X+1}, s{P+1}
    s_mov_b32 s{SRD_X+2}, 0x400000
    s_mov_b32 s{SRD_X+3}, 0x20000
    s_cmp_ge_u32 s{S_WAVE}, 5
    s_cselect_b32 s{SRD_D}, s{P+8}, s{P+2}
    s_cselect_b32 s{SRD_D+1}, s{P+9}, s{P+3}
    s_cmp_lt_u32 s{S_WAVE}, 2
    s_cselect_b32 s{SRD_D}, s{P}, s{SRD_D}
    s_cselect_b32 s{SRD_D+1}, s{P+1}, s{SRD_D+1}
    s_cselect_b32 s{SRD_D+2}, 0x400000, s{SRD_D+2}
    s_cselect_b32 s{SRD_D+2}, 0x400000, 0x600000
    s_mov_b32 s{SRD_D+3}, 0x20000
    """.replace(f"    s_cselect_b32 s{SRD_D+2}, 0x400000, s{SRD_D+2}\n", "").replace(f"s_cselect_b32 s{SRD_D+2}, 0x400000, 0x600000",
        f"s_mov_b32 s{SRD_D+2}, 0x600000\n    s_cselect_b32 s{SRD_D+2}, s{SRD_X+2}, s{SRD_D+2}").replace("STAMP", "\n".join(stamp_lines())))
    def pf():
        return [f"s_mul_i32 s{S_PFOFF}, s{S_PFCNT}, s{S_STR}",
                f"s_add_u32 s{S_PFOFF}, s{S_PFOFF}, s{S_PFBASE}",
                f"buffer_load_dword v{vpfd}, v{vpf}, s[{SRD_D}:{SRD_D+3}], s{S_PFOFF} offen",
                f"s_add_u32 s{S_PFCNT}, s{S_PFCNT}, 1",
                f"s_and_b32 s{S_PFCNT}, s{S_PFCNT}, 15"]
    def unit(p):
        pre = []
        if p == 0:
            pre += [f"s_mul_i32 s{S_OFF}, s{S_CNT}, s{S_STR}", f"s_add_u32 s{S_OFF}, s{S_OFF}, s{S_BASE}",
                    f"s_add_u32 m0, s{S_M0}, s{S_M0BASE}"]
            post = [f"s_add_u32 s{S_CNT}, s{S_CNT}, 1", f"s_and_b32 s{S_CNT}, s{S_CNT}, 15"]
        else:
            pre += [f"s_add_u32 m0, m0, 4096"]
            post = [f"s_add_u32 s{S_M0}, s{S_M0}, s{S_M0STEP}", f"s_and_b32 s{S_M0}, s{S_M0}, s{S_M0MASK}"]
        d = [f"buffer_load_dwordx4 v{vd+4*p+i}, s[{SRD_D}:{SRD_D+3}], s{S_OFF} offen offset:{i*1024} lds" for i in range(4)]
        return pre, d, post
    def unit_flat(p):
        pre, d, post = unit(p)
        return pre + [post[0]] + d + [post[1]]
    usepf = cfg.pf_mode >= 1
    if usepf:
        if cfg.pfskip: a(f"s_add_u32 s{S_PFCNT}, s{S_PFCNT}, {cfg.pfskip}")
        for i in range(cfg.pf0): a.ext(pf())
        if cfg.pf0: a("s_barrier")
    stamp()
    a.ext(unit_flat(0))
    if cfg.ubar: a("s_barrier")
    a.ext(unit_flat(1))
    for i in range(cfg.pf1 if usepf else 0): a.ext(pf())
    stamp()
    a(f"""
    s_mov_b32 s{SRD_WS}, s{P+18}
    s_mov_b32 s{SRD_WS+1}, s{P+19}
    s_mov_b32 s{SRD_WS+2}, {WS_SIZE}
    s_mov_b32 s{SRD_WS+3}, 0x20000
    s_mov_b32 s{SRD_DBG}, s{P+16}
    s_mov_b32 s{SRD_DBG+1}, s{P+17}
    s_mov_b32 s{SRD_DBG+2}, 256
    s_mov_b32 s{SRD_DBG+3}, 0x20000
    v_and_b32 v{vt}, 15, v0                     ; r
    v_lshrrev_b32 v{vt+1}, 4, v0                ; g
    v_lshrrev_b32 v{vt+2}, 1, v{vt}
    v_xor_b32 v{vt+2}, v{vt+2}, v{vt+1}
    v_lshlrev_b32 v{vt+2}, 4, v{vt+2}
    v_lshl_add_u32 v{vx0}, v{vt}, 7, v{vt+2}
    s_lshl_b32 s{S_T0}, s{S_RQ}, 13
    v_add_u32 v{vx0}, s{S_T0}, v{vx0}
    v_xor_b32 v{vx1}, 64, v{vx0}
    v_lshrrev_b32 v{vt+2}, 2, v{vt}             ; r4
    v_lshl_add_u32 v{vt+2}, v{vt+1}, 3, v{vt+2} ; 8g + r4
    v_lshlrev_b32 v{vt+2}, 7, v{vt+2}
    v_bfe_u32 v{vt+3}, v0, 3, 2                 ; fk
    s_lshl_b32 s{S_T0}, s{S_HH}, 1
    v_xor_b32 v{vt+3}, s{S_T0}, v{vt+3}
    v_lshl_add_u32 v{vt+2}, v{vt+3}, 5, v{vt+2}
    v_and_b32 v{vt+3}, 3, v0
    v_lshl_add_u32 v{vt+2}, v{vt+3}, 3, v{vt+2}
    s_mul_i32 s{S_T0}, s{S_BR}, 49152
    s_add_u32 s{S_T0}, s{S_T0}, 65536
    v_add_u32 v{vw0}, s{S_T0}, v{vt+2}
    v_xor_b32 v{vw1}, 32, v{vw0}
    """)
    def reads(b, st, ks):
        xs = (st % 4)*16384; ws = (st % 2)*8192 + ks*4096
        X = [f"ds_read_b128 {vr(FX(b,T),4)}, v{vx1 if ks else vx0} offset:{xs + T*2048}" for T in range(4)]
        W = []
        for sec in range(3):
            for f in range(2):
                for jh in range(2):
                    W.append(f"ds_read_b64_tr_b16 {vr(FW(b,sec,f)+2*jh,2)}, v{vw1 if f else vw0} offset:{sec*16384 + ws + jh*512}")
        return [X[0], W[0], W[1], W[2], W[3], X[1], W[4], W[5], W[6], W[7], X[2], W[8], W[9], W[10], W[11], X[3]]
    def mfmas(b, first=False):
        out = []
        c = 0 if first else None
        for T in range(4):
            for sec in range(3):
                for f in range(2):
                    k = "QKV"[sec]
                    if sec < 2: out.append(mfma16(A(k,T,f), FW(b,sec,f), FX(b,T), c))
                    else: out.append(mfma16(A(k,T,f), FX(b,T), FW(b,sec,f), c))
        return out
    for i in range(96): a(f"v_mov_b32 v{acc+i}, 0")
    a(f"s_waitcnt vmcnt({cfg.pf1 if usepf else 0})")
    stamp()
    a("s_barrier")
    stamp(True)
    a.ext(reads(0, 0, 0))
    a.ext(unit_flat(0))
    a(f"s_cmp_ge_u32 s{S_WAVE}, 2\ns_cbranch_scc1 Lp1_w")
    a.ext(unit_flat(1));
    if usepf: a.ext(pf())
    a.ext(unit_flat(0))
    a("Lp1_w:")
    lab = [0]
    def kstep(st, ks, units, do_reads, wait_vm, pfsel=None, last=False):
        M = mfmas(ks)
        fill = {}
        def put(pos, x): fill.setdefault(pos, []).append(x)
        nst, nks = (st, 1) if ks == 0 else (st+1, 0)
        if do_reads:
            for i, r in enumerate(reads(1-ks, nst, nks)): put(1 + i, r)
        if len(units) == 1:
            pre, d, post = unit(units[0])
            for i, x in enumerate(pre): put(1 + i, x)
            for i, x in enumerate(d): put(cfg.dpos[i], x)
            for i, x in enumerate(post): put(22 + i, x)
        elif len(units) == 2:
            for n, p in enumerate(units):
                pre, d, post = unit(p)
                b = 11*n
                for i, x in enumerate(pre): put(b + 1, x)
                put(b + 2, post[0])
                for i, x in enumerate(d): put(b + 3 + 2*i, x)
                put(b + 11, post[1])
        if pfsel and usepf:
            q = pf()
            if pfsel == 1:
                put(17, q[0]); put(18, q[1]); put(cfg.pfpos, q[2]); put(22, q[3]); put(23, q[4])
            else:
                for n in range(pfsel):
                    for x in q: put(21 + n, x)
        if cfg.prio == "quarter":
            put(0, "s_setprio 3"); put(6, "s_setprio 2"); put(12, "s_setprio 1"); put(18, "s_setprio 0")
        elif cfg.prio == "half":
            put(0, "s_setprio 1"); put(12, "s_setprio 0")
        out = weave(M, fill)
        if not last:
            out.append(f"s_waitcnt vmcnt({wait_vm}) lgkmcnt(0)" if wait_vm is not None else "s_waitcnt lgkmcnt(0)")
            out.append("s_barrier")
        return out
    a("s_waitcnt lgkmcnt(0)\ns_barrier")
    e = 1 if usepf else 0
    need = (cfg.D + 1 - cfg.pfskip - cfg.pf0 - cfg.pf1) if usepf else 0
    n0 = min(2, need); n1 = need - n0
    assert 0 <= n1 <= 2
    a.ext(kstep(0, 0, [1, 0], True, 8 + n0, pfsel=n0))
    a.ext(kstep(0, 1, [1], True, 8 + n0 + n1, pfsel=n1))
    first_loop_wait = None
    if cfg.diag: stamp()
    if not cfg.diag:
        a(f"s_mov_b32 s{S_IT}, 3")
        a(".p2align 6\nLp1:")
    for it in range(3 if cfg.diag else 1):
        for st in range(1, 5):
            for ks in range(2):
                a.ext(kstep(st, ks, [ks], True, 8 + (2*e if ks == 0 else e), pfsel=(ks == 0)))
            if cfg.diag: stamp()
    if not cfg.diag:
        a(f"s_sub_u32 s{S_IT}, s{S_IT}, 1\ns_cmp_lg_u32 s{S_IT}, 0\ns_cbranch_scc1 Lp1")
    a(f"s_cmp_lt_u32 s{S_WAVE}, 2\ns_cselect_b32 s{S_BASE}, 0x40000000, s{S_BASE}\ns_cselect_b32 s{S_M0BASE}, 0x30000, s{S_M0BASE}\ns_cselect_b32 s{S_M0}, 0, s{S_M0}")
    for st in range(13, 16):
        for ks in range(2):
            u = 2*(st-13) + ks
            wait = {0: 8 + e, 1: 8, 2: 4, 3: 0, 4: None}.get(u)
            a.ext(kstep(st, ks, [ks] if st == 13 else [], u < 5, wait, last=(u == 5)))
    a("s_setprio 0")
    stamp(True)
    if cfg.stop_after == "p1":
        a("s_nop 7")
        a(f"""
        s_lshl_b32 s{S_T0}, s{S_WG}, 3
        s_add_u32 s{S_T0}, s{S_T0}, s{S_WAVE}
        s_mul_i32 s{S_T0}, s{S_T0}, {48*256}
        """)
        for i in range(48): a(f"v_cvt_pk_bf16_f32 v{acc+i}, v{acc+2*i}, v{acc+2*i+1}")
        for i in range(12):
            a(f"buffer_store_dwordx4 {vr(acc+4*i,4)}, v{vL16}, s[{SRD_WS}:{SRD_WS+3}], s{S_T0} offen sc1")
            a(f"s_add_u32 s{S_T0}, s{S_T0}, 1024")
        a("s_waitcnt vmcnt(0)")
        a("s_barrier")
        stamp()
    else:
        import rest
        rest.emit(a, cfg, stamp, A, vt, vL16)
    if cfg.stamps:
        n = nstamp[0]
        a(f"s_waitcnt lgkmcnt(0)")
        a(f"s_lshl_b32 s{S_T0}, s{S_WG}, 3\ns_add_u32 s{S_T0}, s{S_T0}, s{S_WAVE}\ns_lshl_b32 s{S_T0}, s{S_T0}, 7\ns_add_u32 s{S_T0}, s{S_T0}, {WS_TS + (8<<20)}")
        a(f"v_mov_b32 v{vt+4}, 0")
        for i in range(n):
            a(f"v_mov_b32 v{vt}, s{S_TS+i}")
            a(f"buffer_store_dword v{vt}, v{vt+4}, s[{SRD_WS}:{SRD_WS+3}], s{S_T0} offen offset:{4*i}")
        a("s_waitcnt vmcnt(0)")
    a("Lend:\ns_endpgm")
    if cfg.stop_after != "p1": rest.emit_cold(a, cfg, vt, vL16)
    head = f"""; fused gated attention kernel (generated by gen/gen.py)
; @launch grid=(256,1,1) block=(512,1,1) lds=163840
.amdgcn_target "amdgcn-amd-amdhsa--gfx950"
.text
.globl {NAME}
.p2align 8
.type {NAME},@function
{NAME}:
"""
    foot = f"""
.section .rodata,"a"
.p2align 6
.amdhsa_kernel {NAME}
  .amdhsa_next_free_vgpr 256
  .amdhsa_next_free_sgpr 102
  .amdhsa_accum_offset 256
  .amdhsa_group_segment_fixed_size 0
  .amdhsa_kernarg_size 80
  .amdhsa_user_sgpr_count 2
  .amdhsa_user_sgpr_kernarg_segment_ptr 1
  .amdhsa_system_sgpr_workgroup_id_x 1
.end_amdhsa_kernel
"""
    return head + a.text() + foot, nstamp[0]

if __name__ == "__main__":
    t, n = gen(Cfg())
    out = sys.argv[1] if len(sys.argv) > 1 else "g.s"
    open(out, "w").write(t)
```
